```python
import torch

def _softmax(x, axis=-1):
    return torch.softmax(x, dim=axis)
def _gelu(x):
    return torch.nn.functional.gelu(x, approximate="tanh")
def _silu(x):
    return torch.nn.functional.silu(x)
def _sigmoid(x):
    return torch.sigmoid(x)
def _layernorm(x, axis=-1, eps=1e-5):
    m = x.mean(dim=axis, keepdim=True)
    v = x.var(dim=axis, keepdim=True, unbiased=False)
    return (x - m) / torch.sqrt(v + eps)
def _scatter_add(tgt, idx, src, axis=0):
    return tgt.clone().index_add_(axis, idx, src)
def _segment_sum(src, seg, n):
    out = torch.zeros((n,) + src.shape[1:], dtype=src.dtype)
    return out.index_add_(0, seg, src)
def _pad(x, pw):
    flat = tuple(v for pair in reversed(pw) for v in pair)
    return torch.nn.functional.pad(x, flat)

kernel_name = 'gated_mix__mha_block__mha_block__prompt'

def setup_inputs():

    _w = (lambda a: (lambda t: t.to(torch.bfloat16) if t.is_floating_point() else t)(torch.as_tensor(a)))
    def _A_setup():
        B, S, D, H = 1, 2048, 448, 16
        return {
            "x": _w((lambda *s: torch.randn(*s, dtype=torch.bfloat16) * 0.05)(B, S, D)),
            "wqkv": _w((lambda *s: torch.randn(*s, dtype=torch.bfloat16) * 0.8)(D, 3 * D)),
            "wo": _w((lambda *s: torch.randn(*s, dtype=torch.bfloat16) * 0.05)(D, D)),
        }
    _A_in = _A_setup()

    def _B_setup():
        B, S, D, H = 1, 2048, 448, 16
        return {
            "x": _w((lambda *s: torch.randn(*s, dtype=torch.bfloat16) * 0.05)(B, S, D)),
            "wqkv": _w((lambda *s: torch.randn(*s, dtype=torch.bfloat16) * 0.8)(D, 3 * D)),
            "wo": _w((lambda *s: torch.randn(*s, dtype=torch.bfloat16) * 0.05)(D, D)),
        }
    _B_in = _B_setup()

    return {
        "A_x": _A_in["x"],
        "A_wqkv": _A_in["wqkv"],
        "A_wo": _A_in["wo"],
        "B_x": _B_in["x"],
        "B_wqkv": _B_in["wqkv"],
        "B_wo": _B_in["wo"],
        "gate_w": _w((lambda *s: torch.randn(*s, dtype=torch.bfloat16) * 0.05)(448) * 16.0),
    }

def reference(A_x, A_wqkv, A_wo, B_x, B_wqkv, B_wo, gate_w):
    def _A_ref(x, wqkv, wo):
        B, S, D = x.shape
        H = 16
        Dh = D // H
        qkv = (lambda x, *d: x.permute(*d))((x @ wqkv).reshape(B, S, 3, H, Dh), 2, 0, 3, 1, 4)
        q, k, v = qkv[0], qkv[1], qkv[2]
        scores = torch.einsum("bhqd,bhkd->bhqk", q, k) * (Dh ** -0.5)
        p = _softmax(scores, axis=-1)
        o = torch.einsum("bhqk,bhkd->bhqd", p, v)
        return (lambda x, *d: x.permute(*d))(o, 0, 2, 1, 3).reshape(B, S, D) @ wo

    def _B_ref(x, wqkv, wo):
        B, S, D = x.shape
        H = 16
        Dh = D // H
        qkv = (lambda x, *d: x.permute(*d))((x @ wqkv).reshape(B, S, 3, H, Dh), 2, 0, 3, 1, 4)
        q, k, v = qkv[0], qkv[1], qkv[2]
        scores = torch.einsum("bhqd,bhkd->bhqk", q, k) * (Dh ** -0.5)
        p = _softmax(scores, axis=-1)
        o = torch.einsum("bhqk,bhkd->bhqd", p, v)
        return (lambda x, *d: x.permute(*d))(o, 0, 2, 1, 3).reshape(B, S, D) @ wo

    x = A_x
    g = _sigmoid((x * gate_w).sum(-1, keepdims=True))
    a = _A_ref(x, A_wqkv, A_wo)
    b = _B_ref(x, B_wqkv, B_wo)
    return g * a + (1 - g) * b
```

```python
class Em:
    def __init__(self):
        self.l = []
        self.vm = []
    def __call__(self, s):
        for x in s.strip("\n").split("\n"):
            x = x.strip()
            if x: self.l.append(x if x.endswith(":") else "    " + x)
    def c(self, s): self.l.append("    ; " + s)
    def vmem(self, s, tag):
        self(s); self.vm.append(tag)
    def wait_vm(self, tags):
        idx = max((i for i, t in enumerate(self.vm) if t in tags), default=-1)
        if idx < 0: return
        n = len(self.vm) - 1 - idx
        self(f"s_waitcnt vmcnt({n})")
        self.vm = self.vm[idx+1:]
    def wait_vm_all(self):
        self("s_waitcnt vmcnt(0)"); self.vm = []
    def text(self): return "\n".join(self.l) + "\n"

def vr(b, n): return f"v[{b}:{b+n-1}]"
def ar(b, n): return f"a[{b}:{b+n-1}]"
def sr(b, n): return f"s[{b}:{b+n-1}]"

def srd(e, d, lo, hi, nbytes):
    e(f"s_mov_b32 s{d}, s{lo}\ns_mov_b32 s{d+1}, s{hi}\ns_mov_b32 s{d+2}, {nbytes}\ns_mov_b32 s{d+3}, 0x00020000")

def kd(name, nv, ao, ns=96):
    return f""".amdhsa_kernel {name}
  .amdhsa_next_free_vgpr {nv}
  .amdhsa_next_free_sgpr {ns}
  .amdhsa_accum_offset {ao}
  .amdhsa_group_segment_fixed_size 0
  .amdhsa_kernarg_size 80
  .amdhsa_user_sgpr_count 2
  .amdhsa_user_sgpr_kernarg_segment_ptr 1
  .amdhsa_system_sgpr_workgroup_id_x 1
.end_amdhsa_kernel
"""
HEADER = open("gated_mix__mha_block__mha_block__prompt.s.ref").read().split("; Override")[0]
```

```python
from common import *
import math, struct
def f2u(x): return struct.unpack("<I", struct.pack("<f", x))[0]
CS = (28 ** -0.5) * math.log2(math.e)
WREG = 0
XREG = 90112
LDS1 = XREG + 65536
KV_OFF = 0
O_OFF = 8 << 20
ST_OFF = 16 << 20
sX, sW, sKV, sO, sD = 8, 12, 16, 20, 24
sw, sg, sj, shd = 28, 29, 30, 31
st0, st1, st2, st3 = 32, 33, 34, 35
sxoff, sm0x = 36, 37
sA, sB, sC = 40, 41, 42
sslab, scnt = 43, 44
sST = 48
sstamp = 52
vL16 = 1; vXD = 2; vWD = 6; vWA = 7; vWB = 8; vXR = 9
vCUR, vNXT, vIDX = 13, 14, 15
aQ, aK, aV = 16, 32, 48
XF = 64; WF = 96; Q = 120
X, Y, O = 16, 32, 48
K0, K1, V0, V1 = 64, 68, 72, 76
T = 80

class K1Gen:
    def __init__(self, stamps=False, mapping="Y", pos=(2, 4)):
        self.e = Em(); self.stamps = stamps; self.mapping = mapping; self.ns = 0; self.pos = pos
    def stamp(self):
        if self.stamps:
            self.e(f"s_memtime s[{sstamp+2*self.ns}:{sstamp+1+2*self.ns}]"); self.ns += 1
            self.e("s_waitcnt lgkmcnt(0)")
    def prologue(self):
        e = self.e
        e(f"""s_cmp_ge_u32 s2, 256
s_cbranch_scc1 K1_END
s_load_dwordx4 s[4:7], s[0:1], 0
s_load_dwordx2 s[{st0}:{st1}], s[0:1], 32
s_load_dwordx4 s[44:47], s[0:1], 64
v_lshrrev_b32 v1, 6, v0
v_and_b32 v0, 63, v0
v_readfirstlane_b32 s{sw}, v1""")
        if self.mapping == "Y":
            e(f"""s_and_b32 s{sg}, s2, 7
s_lshl_b32 s{sg}, s{sg}, 2
s_lshr_b32 s{st2}, s2, 3
s_and_b32 s{st2}, s{st2}, 3
s_add_u32 s{sg}, s{sg}, s{st2}
s_lshr_b32 s{sj}, s2, 5""")
        else:
            e(f"s_and_b32 s{sj}, s2, 7\ns_lshr_b32 s{sg}, s2, 3")
        e(f"s_and_b32 s{shd}, s{sg}, 15")
        e(f"""v_lshlrev_b32 v{vL16}, 4, v0
v_lshrrev_b32 v{T}, 3, v0
v_mul_u32_u24 v{T}, 896, v{T}
v_lshrrev_b32 v{T+1}, 4, v0
v_and_b32 v{T+2}, 7, v0
v_xor_b32 v{T+1}, v{T+1}, v{T+2}
v_lshl_add_u32 v{vXD}, v{T+1}, 4, v{T}
v_xor_b32 v{T+1}, 4, v{T+1}
v_lshl_add_u32 v{vXD+1}, v{T+1}, 4, v{T}
v_add_u32 v{vXD+1}, {7168-1024}, v{vXD+1}
v_add_u32 v{vXD+2}, {2*(7168-1024)}, v{vXD}
v_add_u32 v{vXD+3}, {2*(7168-1024)}, v{vXD+1}
v_lshrrev_b32 v{T}, 2, v0
v_mul_u32_u24 v{T}, 2688, v{T}
v_and_b32 v{T+1}, 3, v0
v_lshl_add_u32 v{vWD}, v{T+1}, 4, v{T}""")
        e(f"""s_lshl_b32 s{st2}, s{sj}, 3
s_add_u32 s{st2}, s{st2}, s{sw}
s_mul_i32 s{sxoff}, s{st2}, {32*896}
s_lshl_b32 s{sm0x}, s{sw}, 12
s_add_u32 s{sm0x}, s{sm0x}, {XREG}
s_waitcnt lgkmcnt(0)""")
        srd(e, sX, 4, 5, 1835008)
        e(f"""s_cmp_ge_u32 s{sg}, 16
s_cselect_b32 s{sW}, s{st0}, s6
s_cselect_b32 s{sW+1}, s{st1}, s7
s_mov_b32 s{sW+2}, 1204224
s_mov_b32 s{sW+3}, 0x00020000""")
        self.stamp()
    def dma_x(self, c):
        e = self.e
        e(f"s_add_u32 m0, s{sm0x}, {(c%2)*32768}")
        e(f"s_add_u32 s{st0}, s{sxoff}, {c*128}")
        for i in range(4):
            e.vmem(f"buffer_load_dwordx4 v{vXD+i}, {sr(sX,4)}, s{st0} offen offset:{1024*i} lds", f"x{c}")
    def dma_w(self, i):
        e = self.e
        e(f"""s_add_u32 s{st0}, s{sw}, {8*i}
s_lshl_b32 m0, s{st0}, 10
s_mul_i32 s{st1}, s{st0}, 43691
s_lshr_b32 s{st1}, s{st1}, 17
s_mul_i32 s{st1}, s{st1}, {16*2688-3*896}
s_mul_i32 s{st0}, s{st0}, 896
s_add_u32 s{st0}, s{st0}, s{st1}
s_add_u32 s{st0}, s{st0}, s{st3}""")
        e.vmem(f"buffer_load_dwordx4 v{vWD}, {sr(sW,4)}, s{st0} offen lds", f"w{i}")
    def setup2(self):
        e = self.e
        e(f"""s_lshl_b32 s{st0}, s{sg}, 18
s_add_u32 s{sKV}, s46, s{st0}
s_addc_u32 s{sKV+1}, s47, 0
s_mov_b32 s{sKV+2}, 262144
s_mov_b32 s{sKV+3}, 0x00020000
s_add_u32 s{sO}, s46, {O_OFF}
s_addc_u32 s{sO+1}, s47, 0
s_mov_b32 s{sO+2}, {4<<20}
s_mov_b32 s{sO+3}, 0x00020000""")
        srd(e, sD, 44, 45, 256)
        if self.stamps:
            e(f"""s_add_u32 s{sST}, s46, {ST_OFF}
s_addc_u32 s{sST+1}, s47, 0
s_mov_b32 s{sST+2}, {1<<20}
s_mov_b32 s{sST+3}, 0x00020000""")
        e(f"""v_lshrrev_b32 v{T}, 5, v0
v_lshlrev_b32 v{T}, 9, v{T}
v_bfe_u32 v{T+1}, v0, 2, 2
v_lshl_add_u32 v{T}, v{T+1}, 6, v{T}
v_bfe_u32 v{T+1}, v0, 4, 1
v_lshl_add_u32 v{T}, v{T+1}, 5, v{T}
v_and_b32 v{T+1}, 3, v0
v_lshl_add_u32 v{vWA}, v{T+1}, 3, v{T}
v_add_u32 v{vWB}, {14*3072}, v{vWA}""")
        e(f"""v_and_b32 v{T}, 31, v0
v_lshrrev_b32 v{T+1}, 5, v0
v_bfe_u32 v{T+2}, v0, 1, 3
v_xor_b32 v{T+1}, v{T+1}, v{T+2}
v_lshlrev_b32 v{T}, 7, v{T}
v_add_u32 v{T}, s{sm0x}, v{T}""")
        for s in range(4):
            e(f"v_xor_b32 v{T+2}, {2*s}, v{T+1}\nv_lshl_add_u32 v{vXR+s}, v{T+2}, 4, v{T}")
        e(f"v_mov_b32 v{vIDX}, 0xdddddddd")
    def rd_x(self, c):
        return [f"ds_read_b128 {vr(XF+16*(c%2)+4*s,4)}, v{vXR+s} offset:{(c%2)*32768}" for s in range(4)]
    def rd_w(self, s):
        out = []
        base, off = (vWA, s*3072) if s < 14 else (vWB, (s-14)*3072)
        for seg in range(3):
            for half in range(2):
                out.append(f"ds_read_b64_tr_b16 {vr(WF+12*(s%2)+4*seg+2*half,2)}, v{base} offset:{off+seg*1024+half*256}")
        return out
    def phase1(self):
        e = self.e
        e(f"s_mul_i32 s{st3}, s{shd}, 56")
        self.dma_x(0); self.dma_w(0); self.dma_w(1); self.dma_x(1)
        for i in (2, 3, 4): self.dma_w(i)
        self.setup2()
        later = {0: (5, 6, 7), 1: (8, 9, 10)}
        need = {c: [f"x{c}"] + [f"w{i}" for i in range((12*c+11)//8+1)] for c in range(7)}
        done_w = -1
        def ready(c):
            nonlocal done_w
            e.wait_vm(need[c])
            left = [int(t[1:]) for t in e.vm if t[0] == "w"]
            issued = 4 + 3*min(max(c-1, 0), 2) if c >= 1 else 4
            if done_w < (12*c+11)//8:
                e("s_barrier")
                done_w = (min(left)-1) if left else self.w_issued
        self.w_issued = 4
        ready(0)
        self.stamp()
        for r in self.rd_x(0) + self.rd_w(0): e(r)
        for s in range(28):
            c, sp = divmod(s, 4)
            e("s_waitcnt lgkmcnt(0)")
            xf = XF + 16*(c%2) + 4*sp
            wf = WF + 12*(s%2)
            cin = lambda a: "0" if s == 0 else vr(a, 16)
            m = [f"v_mfma_f32_32x32x16_bf16 {vr(aK,16)}, {vr(wf+4,4)}, {vr(xf,4)}, {cin(aK)}",
                 f"v_mfma_f32_32x32x16_bf16 {vr(aV,16)}, {vr(xf,4)}, {vr(wf+8,4)}, {cin(aV)}",
                 f"v_mfma_f32_32x32x16_bf16 {vr(aQ,16)}, {vr(wf,4)}, {vr(xf,4)}, {cin(aQ)}"]
            e(m[0])
            rds = []
            if s + 1 < 28:
                if sp == 3:
                    ready(c+1)
                    rds += self.rd_x(c+1)[:1] + self.rd_w(s+1) + self.rd_x(c+1)[1:]
                else:
                    rds += self.rd_w(s+1)
            h = (len(rds)+1)//2
            for r in rds[:h]: e(r)
            e(m[1])
            for r in rds[h:]: e(r)
            e(m[2])
            if sp == 0:
                if c + 2 < 7: self.dma_x(c+2)
                for i in later.get(c, ()):
                    self.dma_w(i); self.w_issued = i
        self.stamp()
    def epilogue1(self):
        e = self.e
        e(f"""v_mov_b32 v{T}, {hex(f2u(CS))}
v_cmp_gt_u32 vcc, 32, v0
v_and_b32 v{T+2}, 31, v0
v_mov_b32 v{T+4}, 0x3f803f80
v_cndmask_b32 v{T+1}, 0, v{T}, vcc
v_cmp_eq_u32 vcc, 28, v{T+2}
v_bfe_u32 v{T+5}, v0, 2, 1
v_bfe_u32 v{T+6}, v0, 3, 1
v_cndmask_b32 v{T+3}, 0, v{T+4}, vcc
v_and_b32 v{T+7}, 0x33, v0
v_lshl_add_u32 v{T+7}, v{T+5}, 3, v{T+7}
v_lshl_add_u32 v{T+7}, v{T+6}, 2, v{T+7}
v_lshlrev_b32 v{T+7}, 4, v{T+7}
v_cmp_gt_u32 vcc, 28, v{T+2}
v_add_u32 v{T+8}, s{sm0x}, v{T+7}
v_add_u32 v{T+9}, s{sm0x}, v{vL16}
s_lshl_b32 s{st0}, s{sj}, 3
s_add_u32 s{st0}, s{st0}, s{sw}
s_lshl_b32 s{st0}, s{st0}, 12""")
        for i in range(8): e(f"v_cvt_pk_bf16_f32 v{K0+i}, v{aK+2*i}, v{aK+2*i+1}")
        for f in range(2):
            e.vmem(f"buffer_store_dwordx4 {vr(K0+4*f,4)}, v{T+7}, {sr(sKV,4)}, s{st0} offen offset:{1024*f} sc1", "st")
            e(f"ds_write_b128 v{T+8}, {vr(K0+4*f,4)} offset:{1024*f}")
        for i in range(8):
            e(f"v_cvt_pk_bf16_f32 v{V0+i}, v{aV+2*i}, v{aV+2*i+1}")
        for i in range(8):
            e(f"v_cndmask_b32 v{V0+i}, v{T+3}, v{V0+i}, vcc")
        for f in range(2):
            e.vmem(f"buffer_store_dwordx4 {vr(V0+4*f,4)}, v{vL16}, {sr(sKV,4)}, s{st0} offen offset:{2048+1024*f} sc1", "st")
            e(f"ds_write_b128 v{T+9}, {vr(V0+4*f,4)} offset:{2048+1024*f}")
        for i in range(16): e(f"v_mul_f32 v{aQ+i}, v{T if i < 12 else T+1}, v{aQ+i}")
        for i in range(8): e(f"v_cvt_pk_bf16_f32 v{Q+i}, v{aQ+2*i}, v{aQ+2*i+1}")
        for i in range(16): e(f"v_mov_b32 v{O+i}, 0")
        e(f"""s_mov_b32 s{sA}, {XREG}
s_mov_b32 s{sB}, 0
s_mov_b32 s{sC}, 32768
v_add_u32 v{vCUR}, {XREG}, v{vL16}
v_mov_b32 v{vNXT}, v{vL16}
s_mov_b32 s{sslab}, s{sj}
s_waitcnt lgkmcnt(0)
s_barrier""")
        self.stamp()
    def kv_rd(self, frag, t):
        reg = (K0, K1, V0, V1)[frag]
        a, tt = (vCUR, t) if t < 8 else (vNXT, t-8)
        return f"ds_read_b128 {vr(reg,4)}, v{a} offset:{tt*4096+frag*1024}"
    def dma_slab(self, slotreg):
        e = self.e
        e(f"""s_add_u32 s{sslab}, s{sslab}, 1
s_and_b32 s{sslab}, s{sslab}, 7
s_lshl_b32 s{st1}, s{sw}, 12
s_add_u32 m0, s{slotreg}, s{st1}
s_lshl_b32 s{st0}, s{sslab}, 15
s_add_u32 s{st0}, s{st0}, s{st1}""")
        for f in range(4):
            e(f"buffer_load_dwordx4 v{vL16}, {sr(sKV,4)}, s{st0} offen offset:{1024*f} sc1 lds")
    def tile(self, i, first=False):
        e = self.e
        P, N = (X, Y) if i % 2 == 0 else (Y, X)
        ex = lambda a, b: [e(f"v_exp_f32 v{P+r}, v{P+r}") for r in range(a, b)]
        ex(0, 2)
        if not first: e(f"v_smfmac_f32_32x32x32_bf16 {vr(O,16)}, {vr(V1,4)}, {vr(N+8,8)}, v{vIDX}")
        e(self.kv_rd(3, i))
        ex(2, 5)
        e(f"v_mfma_f32_32x32x16_bf16 {vr(N,16)}, {vr(K0,4)}, {vr(Q,4)}, 0")
        e(self.kv_rd(0, i+2))
        ex(5, 8)
        e("s_waitcnt lgkmcnt(2)")
        e(f"v_mfma_f32_32x32x16_bf16 {vr(N,16)}, {vr(K1,4)}, {vr(Q+4,4)}, {vr(N,16)}")
        e(self.kv_rd(1, i+2))
        ex(8, 12)
        e(f"v_smfmac_f32_32x32x32_bf16 {vr(O,16)}, {vr(V0,4)}, {vr(P,8)}, v{vIDX}")
        e(self.kv_rd(2, i+1))
        ex(12, 16)
        e("s_waitcnt lgkmcnt(2)")
    def rotate(self):
        self.e(f"""s_mov_b32 s{st0}, s{sA}
s_mov_b32 s{sA}, s{sB}
s_mov_b32 s{sB}, s{sC}
s_mov_b32 s{sC}, s{st0}
v_mov_b32 v{vCUR}, v{vNXT}
v_add_u32 v{vNXT}, s{sB}, v{vL16}""")
    def attention(self):
        e = self.e
        e(self.kv_rd(0, 0)); e(self.kv_rd(1, 0)); e(self.kv_rd(2, 0))
        e("s_waitcnt lgkmcnt(2)")
        e(f"v_mfma_f32_32x32x16_bf16 {vr(X,16)}, {vr(K0,4)}, {vr(Q,4)}, 0")
        e(self.kv_rd(0, 1))
        e("s_waitcnt lgkmcnt(2)")
        e(f"v_mfma_f32_32x32x16_bf16 {vr(X,16)}, {vr(K1,4)}, {vr(Q+4,4)}, {vr(X,16)}")
        e(self.kv_rd(1, 1))
        e("s_nop 10\ns_waitcnt lgkmcnt(1)")
        for i in range(8):
            if i == self.pos[0]:
                e.wait_vm_all()
                e(f"""s_barrier
s_cmp_lg_u32 s{sw}, 0
s_cbranch_scc1 K1_NOFLAG
s_lshl_b32 s{st0}, 1, s{sj}
s_lshl_b32 s{st1}, s{sg}, 3
v_mov_b32 v{T}, s{st0}
v_mov_b32 v{T+1}, s{st1}
s_mov_b64 exec, 1
buffer_atomic_or v{T}, v{T+1}, {sr(sD,4)}, 0 offen sc1
s_mov_b64 exec, -1
K1_NOFLAG:""")
                self.stamp()
            if i == self.pos[1]:
                e(f"""s_cmp_lg_u32 s{sw}, 0
s_cbranch_scc1 K1_POLLED
s_mov_b32 s{scnt}, 200000
K1_POLL:
buffer_load_dword v{T}, v{T+1}, {sr(sD,4)}, 0 offen sc1
s_waitcnt vmcnt(0)
v_readfirstlane_b32 s{st0}, v{T}
s_sub_u32 s{scnt}, s{scnt}, 1
s_cmp_eq_u32 s{scnt}, 0
s_cbranch_scc1 K1_POLLED
s_cmp_lg_u32 s{st0}, 0xff
s_cbranch_scc1 K1_POLL
K1_POLLED:
s_barrier""")
                self.stamp()
                self.dma_slab(sB)
            if i == 6:
                e("s_waitcnt vmcnt(0)\ns_barrier")
                self.stamp()
                self.dma_slab(sC)
            self.tile(i, first=(i == 0))
        self.rotate()
        e(f"s_mov_b32 s{scnt}, 7")
        self.stamp()
        e(".p2align 6\nK1_LOOP:")
        for i in range(8):
            if i == 6:
                e(f"""s_waitcnt vmcnt(0)
s_barrier
s_cmp_le_u32 s{scnt}, 2
s_cbranch_scc1 K1_NODMA""")
                self.dma_slab(sC)
                e("K1_NODMA:")
            self.tile(i)
        self.rotate()
        e(f"""s_sub_u32 s{scnt}, s{scnt}, 1
s_cmp_lg_u32 s{scnt}, 0
s_cbranch_scc1 K1_LOOP
v_smfmac_f32_32x32x32_bf16 {vr(O,16)}, {vr(V1,4)}, {vr(Y+8,8)}, v{vIDX}""")
        self.stamp()
    def check_and_fallback(self):
        e = self.e
        e(f"""s_waitcnt lgkmcnt(0)
s_nop 10
v_mov_b32 v{T}, v{O+12}
v_mov_b32 v{T+1}, v{O+12}
v_add_f32 v{T+2}, abs(v{O}), abs(v{O+1})""")
        for i in range(2, 16): e(f"v_add_f32 v{T+2}, v{T+2}, abs(v{O+i})")
        e(f"""v_permlane32_swap_b32 v{T+1}, v{T}
s_mov_b32 s{st0}, {hex(f2u(2.0**120))}
s_mov_b32 s{st1}, {hex(f2u(2.0**40))}
s_mov_b32 s{st2}, {hex(f2u(2.0**-24))}
v_cmp_gt_f32 s[36:37], s{st0}, v{T+2}
v_cmp_ge_f32 s[38:39], s{st1}, v{T}
v_cmp_le_f32 vcc, s{st2}, v{T}
s_nop 1
s_and_b64 s[36:37], s[36:37], s[38:39]
s_and_b64 s[36:37], s[36:37], vcc
s_cmp_eq_u64 s[36:37], -1
s_cbranch_scc0 K1_FALLBACK
K1_FINISH:""")
    def fallback(self):
        e = self.e
        M = 96
        e(f"""K1_FALLBACK:
s_waitcnt vmcnt(0) lgkmcnt(0)
v_mov_b32 v{T}, 0xff800000
s_mov_b32 s{st0}, 0
K1_FB1:
buffer_load_dwordx4 {vr(K0,4)}, v{vL16}, {sr(sKV,4)}, s{st0} offen sc1
buffer_load_dwordx4 {vr(K1,4)}, v{vL16}, {sr(sKV,4)}, s{st0} offen offset:1024 sc1
s_waitcnt vmcnt(0)
v_mfma_f32_32x32x16_bf16 {vr(X,16)}, {vr(K0,4)}, {vr(Q,4)}, 0
v_mfma_f32_32x32x16_bf16 {vr(X,16)}, {vr(K1,4)}, {vr(Q+4,4)}, {vr(X,16)}
s_nop 15""")
        for i in range(8): e(f"v_max3_f32 v{T}, v{T}, v{X+2*i}, v{X+2*i+1}")
        e(f"""s_add_u32 s{st0}, s{st0}, 4096
s_cmp_lt_u32 s{st0}, 262144
s_cbranch_scc1 K1_FB1
v_mov_b32 v{T+1}, v{T}
s_nop 1
v_permlane32_swap_b32 v{T+1}, v{T}
s_nop 1
v_max_f32 v{T}, v{T}, v{T+1}""")
        for i in range(16): e(f"v_sub_f32 v{M+i}, 0, v{T}\nv_mov_b32 v{O+i}, 0")
        e(f"""s_mov_b32 s{st0}, 0
K1_FB2:""")
        for f, r in enumerate((K0, K1, V0, V1)):
            e(f"buffer_load_dwordx4 {vr(r,4)}, v{vL16}, {sr(sKV,4)}, s{st0} offen offset:{1024*f} sc1")
        e(f"""s_waitcnt vmcnt(0)
v_mfma_f32_32x32x16_bf16 {vr(X,16)}, {vr(K0,4)}, {vr(Q,4)}, {vr(M,16)}
v_mfma_f32_32x32x16_bf16 {vr(X,16)}, {vr(K1,4)}, {vr(Q+4,4)}, {vr(X,16)}
s_nop 15""")
        for r in range(16): e(f"v_exp_f32 v{X+r}, v{X+r}")
        e(f"""s_nop 3
v_smfmac_f32_32x32x32_bf16 {vr(O,16)}, {vr(V0,4)}, {vr(X,8)}, v{vIDX}
v_smfmac_f32_32x32x32_bf16 {vr(O,16)}, {vr(V1,4)}, {vr(X+8,8)}, v{vIDX}
s_nop 15
s_add_u32 s{st0}, s{st0}, 4096
s_cmp_lt_u32 s{st0}, 262144
s_cbranch_scc1 K1_FB2
v_mov_b32 v{T}, v{O+12}
v_mov_b32 v{T+1}, v{O+12}
s_nop 1
v_permlane32_swap_b32 v{T+1}, v{T}
s_nop 1
s_branch K1_FINISH""")
    def finish(self, sc1=False):
        e = self.e
        e(f"""v_rcp_f32 v{T}, v{T}
v_cmp_gt_u32 vcc, 32, v0
s_lshl_b32 s{st0}, s{sj}, 3
s_add_u32 s{st0}, s{st0}, s{sw}
s_lshl_b32 s{st0}, s{st0}, 5
s_add_u32 s{st0}, s{st0}, s{sg}
s_lshl_b32 s{st0}, s{st0}, 11""")
        for i in range(16): e(f"v_mul_f32 v{O+i}, v{T}, v{O+i}")
        for i in range(8): e(f"v_cvt_pk_bf16_f32 v{K0+i}, v{O+2*i}, v{O+2*i+1}")
        e(f"v_cndmask_b32 v{K0+6}, 0, v{K0+6}, vcc\nv_cndmask_b32 v{K0+7}, 0, v{K0+7}, vcc")
        for f in range(2):
            e(f"buffer_store_dwordx4 {vr(K0+4*f,4)}, v{vL16}, {sr(sO,4)}, s{st0} offen offset:{1024*f}" + (" sc1" if sc1 else ""))
    def dump_stamps(self):
        if not self.stamps: return
        e = self.e
        e("s_waitcnt vmcnt(0)")
        self.stamp()
        e(f"s_memrealtime s[{sstamp+2*self.ns}:{sstamp+1+2*self.ns}]\ns_waitcnt lgkmcnt(0)"); self.ns += 1
        e(f"s_lshl_b32 s{st0}, s2, 3\ns_add_u32 s{st0}, s{st0}, s{sw}\ns_lshl_b32 s{st0}, s{st0}, 7\nv_mov_b32 v{T+1}, 0\ns_mov_b64 exec, 1")
        for i in range(self.ns):
            e(f"v_mov_b32 v{T}, s{sstamp+2*i}\nbuffer_store_dword v{T}, v{T+1}, {sr(sST,4)}, s{st0} offen offset:{4*i}")
    def gen(self):
        e = self.e
        self.prologue(); self.phase1(); self.epilogue1(); self.attention()
        self.check_and_fallback(); self.finish(); self.dump_stamps()
        e("K1_END:\ns_endpgm")
        self.fallback()
        return e.text()
```

```python
from common import *
from k1 import O_OFF, f2u
import math
PIECE = 40960; RING = 3
GOFF = PIECE*RING
LDS2 = GOFF + 256
sX, sWa, sWb, sO, sG, sOut = 8, 12, 16, 20, 24, 28
sw, stt, sng = 32, 33, 34
st0, st1, st2 = 35, 36, 37
vL16 = 1; vWD = 2; vWR1 = 6; vWR2 = 7; vOR = 8
ACC = 16
WF = 32; OF = 48; T = 80
def gen():
    e = Em()
    e(f"""s_cmp_ge_u32 s2, 256
s_cbranch_scc1 K2_END
s_load_dwordx2 s[4:5], s[0:1], 0
s_load_dwordx2 s[6:7], s[0:1], 16
s_load_dwordx4 s[40:43], s[0:1], 40
s_load_dwordx2 s[44:45], s[0:1], 56
s_load_dwordx2 s[46:47], s[0:1], 72
v_lshrrev_b32 v1, 6, v0
v_and_b32 v0, 63, v0
v_readfirstlane_b32 s{sw}, v1
s_and_b32 s{stt}, s2, 7
s_lshl_b32 s{stt}, s{stt}, 3
s_lshr_b32 s{st0}, s2, 3
s_and_b32 s{st0}, s{st0}, 7
s_add_u32 s{stt}, s{stt}, s{st0}
s_lshr_b32 s{sng}, s2, 6
v_lshlrev_b32 v{vL16}, 4, v0
s_mov_b32 s{st1}, 4682
s_mov_b32 s{st2}, 1568""")
    for i in range(4):
        e(f"""s_add_u32 s{st0}, s{sw}, {8*i}
s_lshl_b32 s{st0}, s{st0}, 6
v_add_u32 v{T}, s{st0}, v0
v_mul_u32_u24 v{T+1}, s{st1}, v{T}
v_lshrrev_b32 v{T+1}, 16, v{T+1}
v_mul_u32_u24 v{T+2}, {896-224}, v{T+1}
v_cmp_gt_u32 vcc, s{st2}, v{T}
v_lshl_add_u32 v{T+2}, v{T}, 4, v{T+2}
v_mov_b32 v{T+3}, 0x7ffffff0
v_cndmask_b32 v{vWD+i}, v{T+3}, v{T+2}, vcc""")
    e("s_waitcnt lgkmcnt(0)")
    srd(e, sX, 4, 5, 1835008); srd(e, sWa, 6, 7, 401408); srd(e, sWb, 40, 41, 401408)
    srd(e, sG, 42, 43, 896); srd(e, sOut, 44, 45, 1835008)
    e(f"""s_add_u32 s{sO}, s46, {O_OFF}
s_addc_u32 s{sO+1}, s47, 0
s_mov_b32 s{sO+2}, {4<<20}
s_mov_b32 s{sO+3}, 0x00020000""")
    def dma(q):
        slot = (q % RING) * PIECE
        e(f"""s_lshl_b32 s{st1}, s{sw}, 10
s_add_u32 m0, s{st1}, {slot+32768}
s_lshl_b32 s{st0}, s{stt}, 16
s_add_u32 s{st0}, s{st0}, s{st1}
s_add_u32 s{st0}, s{st0}, {q*8192}""")
        e.vmem(f"buffer_load_dwordx4 v{vL16}, {sr(sO,4)}, s{st0} offen lds", f"p{q}")
        e(f"s_mul_i32 s{st0}, s{sng}, 224\ns_add_u32 s{st0}, s{st0}, {(q%4)*112*896}")
        for i in range(4):
            e(f"s_add_u32 m0, s{st1}, {slot+8192*i}\ns_nop 0")
            e.vmem(f"buffer_load_dwordx4 v{vWD+i}, {sr(sWa if q < 4 else sWb,4)}, s{st0} offen lds", f"p{q}")
    dma(0); dma(1)
    e(f"""s_lshl_b32 s{st0}, s{stt}, 3
s_add_u32 s{st0}, s{st0}, s{sw}
s_mul_i32 s{st0}, s{st0}, {4*896}""")
    e.vmem(f"buffer_load_dwordx4 {vr(60,4)}, v{vL16}, {sr(sG,4)}, 0 offen", "g")
    for t in range(4):
        e.vmem(f"buffer_load_dwordx4 {vr(64+4*t,4)}, v{vL16}, {sr(sX,4)}, s{st0} offen offset:{896*t}", "g")
    e(f"""v_lshrrev_b32 v{T}, 5, v0
v_lshlrev_b32 v{T}, 4, v{T}
v_bfe_u32 v{T+1}, v0, 4, 1
v_lshl_add_u32 v{T}, v{T+1}, 2, v{T}
v_bfe_u32 v{T+1}, v0, 2, 2
v_add_u32 v{T}, v{T}, v{T+1}
v_mul_u32_u24 v{T}, 224, v{T}
v_and_b32 v{T+1}, 3, v0
v_lshl_add_u32 v{T}, v{T+1}, 3, v{T}
s_lshl_b32 s{st0}, s{sw}, 5
v_add_u32 v{vWR1}, s{st0}, v{T}
v_cmp_gt_u32 vcc, 48, v0
v_add_u32 v{T}, {8*224}, v{vWR1}
v_add_u32 v{T+1}, {4*224}, v{vWR1}
v_cndmask_b32 v{vWR2}, v{T+1}, v{T}, vcc
v_lshrrev_b32 v{T}, 4, v0
v_lshlrev_b32 v{T}, 9, v{T}
v_and_b32 v{T+1}, 15, v0
v_lshl_add_u32 v{vOR}, v{T+1}, 4, v{T}""")
    for i in range(16): e(f"v_mov_b32 v{ACC+i}, 0")
    for q in range(8):
        slot = (q % RING) * PIECE
        e.wait_vm([f"p{q}"])
        e("s_barrier")
        if q + 2 < 8: dma(q+2)
        if q == 2:
            e.wait_vm(["g"])
            for t in range(4):
                e(f"v_mov_b32 v{T+t}, 0")
                for r in range(4): e(f"v_dot2_f32_bf16 v{T+t}, v{64+4*t+r}, v{60+r}, v{T+t}")
            e("s_nop 3")
            for sh in ("row_shr:1", "row_shr:2", "row_shr:4", "row_shr:8"):
                for t in range(4): e(f"v_add_f32_dpp v{T+t}, v{T+t}, v{T+t} {sh} row_mask:0xf bank_mask:0xf bound_ctrl:0")
            for t in range(4): e(f"v_add_f32_dpp v{T+t}, v{T+t}, v{T+t} row_bcast:15 row_mask:0xa bank_mask:0xf")
            for t in range(4): e(f"v_add_f32_dpp v{T+t}, v{T+t}, v{T+t} row_bcast:31 row_mask:0xc bank_mask:0xf")
            for t in range(4): e(f"v_mul_f32 v{T+t}, {hex(f2u(-math.log2(math.e)))}, v{T+t}")
            for t in range(4): e(f"v_exp_f32 v{T+t}, v{T+t}")
            for t in range(4): e(f"v_add_f32 v{T+t}, 1.0, v{T+t}")
            for t in range(4): e(f"v_rcp_f32 v{T+t}, v{T+t}")
            e(f"""s_lshl_b32 s{st0}, s{sw}, 4
s_add_u32 s{st0}, s{st0}, {GOFF}
v_mov_b32 v{T+4}, s{st0}
s_mov_b32 exec_lo, 0
s_mov_b32 exec_hi, 0x80000000
ds_write_b128 v{T+4}, {vr(T,4)}
s_mov_b64 exec, -1""")
        e(f"s_cmp_eq_u32 s{sw}, 7\ns_cbranch_scc1 K2_SKIP{q}")
        e(f"v_add_u32 v{T+8}, {slot}, v{vWR1}\nv_add_u32 v{T+9}, {slot}, v{vWR2}\nv_add_u32 v{T+10}, {slot+32768}, v{vOR}")
        for hh in range(4):
            e(f"ds_read_b64_tr_b16 {vr(WF+4*hh,2)}, v{T+8} offset:{hh*28*224}")
            e(f"ds_read_b64_tr_b16 {vr(WF+4*hh+2,2)}, v{T+9} offset:{hh*28*224}")
        for hp in range(2):
            for hh in (2*hp, 2*hp+1):
                for th in range(2):
                    e(f"ds_read_b128 {vr(96+8*(hh%2)+4*th,4)}, v{T+10} offset:{hh*2048+th*256}")
            e("s_waitcnt lgkmcnt(0)")
            for hh in (2*hp, 2*hp+1):
                for th in range(2):
                    a = ACC + 8*(q//4) + 4*th
                    e(f"v_mfma_f32_16x16x32_bf16 {vr(a,4)}, {vr(WF+4*hh,4)}, {vr(96+8*(hh%2)+4*th,4)}, {vr(a,4)}")
        e(f"K2_SKIP{q}:\ns_waitcnt lgkmcnt(0)")
    e(f"""s_cmp_eq_u32 s{sw}, 7
s_cbranch_scc1 K2_END
v_and_b32 v{T}, 15, v0
v_lshlrev_b32 v{T+1}, 2, v{T}
v_add_u32 v{T+1}, {GOFF}, v{T+1}
ds_read_b32 v{T+2}, v{T+1}
ds_read_b32 v{T+3}, v{T+1} offset:64
v_mul_u32_u24 v{T}, 896, v{T}
v_lshrrev_b32 v{T+1}, 4, v0
v_lshl_add_u32 v{T}, v{T+1}, 3, v{T}
s_mul_i32 s{st0}, s{stt}, {32*896}
s_mul_i32 s{st1}, s{sng}, 224
s_add_u32 s{st0}, s{st0}, s{st1}
s_lshl_b32 s{st1}, s{sw}, 5
s_add_u32 s{st0}, s{st0}, s{st1}
s_add_u32 s{st1}, s{st0}, {16*896}
s_waitcnt lgkmcnt(0)""")
    for th in range(2):
        for r in range(4):
            a, b = ACC+4*th+r, ACC+8+4*th+r
            e(f"v_sub_f32 v{a}, v{a}, v{b}\nv_fma_f32 v{a}, v{a}, v{T+2+th}, v{b}")
        e(f"v_cvt_pk_bf16_f32 v{T+4+2*th}, v{ACC+4*th}, v{ACC+4*th+1}\nv_cvt_pk_bf16_f32 v{T+5+2*th}, v{ACC+4*th+2}, v{ACC+4*th+3}")
        e(f"buffer_store_dwordx2 {vr(T+4+2*th,2)}, v{T}, {sr(sOut,4)}, s{st0 if th == 0 else st1} offen")
    e("K2_END:\ns_endpgm")
    return e.text()
```

```python
import sys
from common import *
import k1, k2
def build(stamps=False, extra=0, **kw):
    n1, n2 = "qkvattn_kernel", "gated_mix__mha_block__mha_block__prompt_kernel"
    s = HEADER
    s += f"; @launch kernel={n1} grid=(256,1,1) block=(512,1,1) lds={k1.LDS1}\n"
    for _ in range(extra): s += f"; @launch kernel=empty_kernel grid=(256,1,1) block=(512,1,1) lds=0\n"
    s += f"; @launch kernel={n2} grid=(256,1,1) block=(512,1,1) lds={k2.LDS2}\n"
    s += '.amdgcn_target "amdgcn-amd-amdhsa--gfx950"\n.text\n'
    ks = [(n1, k1.K1Gen(stamps=stamps, **kw).gen()), (n2, k2.gen())]
    if extra: ks.append(("empty_kernel", "    s_endpgm\n"))
    for n, b in ks:
        s += f".globl {n}\n.p2align 8\n.type {n},@function\n{n}:\n{b}"
    s += '.section .rodata,"a"\n'
    for n, b in ks:
        s += ".p2align 6\n" + kd(n, 128, 128)
    return s
if __name__ == "__main__":
    open("gated_mix__mha_block__mha_block__prompt.s", "w").write(build())
    open("v_stamp.s", "w").write(build(stamps=True))
```
